```python
import torch

def _softmax(x, axis=-1):
    return torch.softmax(x, dim=axis)
def _gelu(x):
    return torch.nn.functional.gelu(x, approximate="tanh")
def _silu(x):
    return torch.nn.functional.silu(x)
def _sigmoid(x):
    return torch.sigmoid(x)
def _layernorm(x, axis=-1, eps=1e-5):
    m = x.mean(dim=axis, keepdim=True)
    v = x.var(dim=axis, keepdim=True, unbiased=False)
    return (x - m) / torch.sqrt(v + eps)
def _scatter_add(tgt, idx, src, axis=0):
    return tgt.clone().index_add_(axis, idx, src)
def _segment_sum(src, seg, n):
    out = torch.zeros((n,) + src.shape[1:], dtype=src.dtype)
    return out.index_add_(0, seg, src)
def _pad(x, pw):
    flat = tuple(v for pair in reversed(pw) for v in pair)
    return torch.nn.functional.pad(x, flat)

kernel_name = 'recurrent_scan__grouped_kv_mqa__glu_gated_reglu__prompt'

def setup_inputs():

    _w = (lambda a: (lambda t: t.to(torch.bfloat16) if t.is_floating_point() else t)(torch.as_tensor(a)))
    def _A_setup():
        B, S, D, H = 1, 2048, 512, 32
        Dh = D // H
        return {
            "x": _w((lambda *s: torch.randn(*s, dtype=torch.bfloat16) * 0.05)(B, S, D)),
            "wq": _w((lambda *s: torch.randn(*s, dtype=torch.bfloat16) * 0.2)(D, H * Dh)),
            "wk": _w((lambda *s: torch.randn(*s, dtype=torch.bfloat16) * 0.2)(D, Dh)),
            "wv": _w((lambda *s: torch.randn(*s, dtype=torch.bfloat16) * 0.2)(D, Dh)),
            "wo": _w((lambda *s: torch.randn(*s, dtype=torch.bfloat16) * 0.2)(H * Dh, D)),
        }
    _A_in = _A_setup()

    def _B_setup():
        B, S, D, F = 1, 2048, 512, 1792
        return {
            "x": _w((lambda *s: torch.randn(*s, dtype=torch.bfloat16) * 0.05)(B, S, D)),
            "W_gate": _w((lambda *s: torch.randn(*s, dtype=torch.bfloat16) * 0.1)(D, F) * (2.0 / D) ** 0.5),
            "W_up": _w((lambda *s: torch.randn(*s, dtype=torch.bfloat16) * 0.1)(D, F) * (2.0 / D) ** 0.5),
            "W_down": _w((lambda *s: torch.randn(*s, dtype=torch.bfloat16) * 0.1)(F, D) * (1.0 / F) ** 0.5),
        }
    _B_in = _B_setup()

    return {
        "A_x": _A_in["x"],
        "A_wq": _A_in["wq"],
        "A_wk": _A_in["wk"],
        "A_wv": _A_in["wv"],
        "A_wo": _A_in["wo"],
        "B_x": _B_in["x"],
        "B_W_gate": _B_in["W_gate"],
        "B_W_up": _B_in["W_up"],
        "B_W_down": _B_in["W_down"],
    }

def reference(A_x, A_wq, A_wk, A_wv, A_wo, B_x, B_W_gate, B_W_up, B_W_down):
    def _A_ref(x, wq, wk, wv, wo):
        B, S, D = x.shape
        H = 32
        Dh = D // H
        q = (lambda x, *d: x.permute(*d))((x @ wq).reshape(B, S, H, Dh), 0, 2, 1, 3)
        k = x @ wk
        v = x @ wv
        scores = torch.einsum("bhqd,bkd->bhqk", q, k) * (Dh ** -0.5)
        p = _softmax(scores, axis=-1)
        o = torch.einsum("bhqk,bkd->bhqd", p, v)
        return (lambda x, *d: x.permute(*d))(o, 0, 2, 1, 3).reshape(B, S, H * Dh) @ wo

    def _B_ref(x, W_gate, W_up, W_down):
        gate = torch.einsum("bsd,df->bsf", x, W_gate)
        up = torch.einsum("bsd,df->bsf", x, W_up)
        gate = gate * (lambda x, dt: x.to(dt))(gate > 0, gate.dtype)
        h = gate * up
        return torch.einsum("bsf,fd->bsd", h, W_down)

    x = A_x
    xn = _layernorm(x, axis=-1)
    s = _A_ref(xn, A_wq, A_wk, A_wv, A_wo)
    g = _silu(_B_ref(xn, B_W_gate, B_W_up, B_W_down))
    return x + s * g
```

```python
import re

class Asm:
    def __init__(self):
        self.lines = []
        self.vm = []
        self.lg = []
    def __call__(self, s):
        for ln in s.split("\n"):
            ln = ln.rstrip()
            if ln.strip():
                self.lines.append(ln if (ln.strip().endswith(":") or ln.startswith(".")) else "    " + ln.strip())
    def label(self, l): self.lines.append(l + ":")
    def c(self, s): self.lines.append("    ; " + s)
    def vmem(self, s, tag):
        self(s); self.vm.append(tag)
    def wait_vm(self, tag, extra=""):
        idx = max(i for i, t in enumerate(self.vm) if t == tag)
        n = len(self.vm) - 1 - idx
        assert n <= 63
        self(f"s_waitcnt vmcnt({n}){extra}")
        self.vm = self.vm[idx+1:]
    def wait_vm_all(self):
        self("s_waitcnt vmcnt(0)"); self.vm = []
    def lds(self, s, tag):
        self(s); self.lg.append(tag)
    def wait_lg(self, tag):
        if tag not in self.lg: return
        idx = max(i for i, t in enumerate(self.lg) if t == tag)
        n = len(self.lg) - 1 - idx
        assert n <= 15, n
        self(f"s_waitcnt lgkmcnt({n})")
        self.lg = self.lg[idx+1:]
    def wait_lg_all(self):
        self("s_waitcnt lgkmcnt(0)"); self.lg = []
    def text(self): return "\n".join(self.lines) + "\n"

def vr(a, n=1):
    return f"v{a}" if n == 1 else f"v[{a}:{a+n-1}]"
def sr(a, n=1):
    return f"s{a}" if n == 1 else f"s[{a}:{a+n-1}]"

_REG = re.compile(r"\b([vsa])(\d+)\b|\b([vsa])\[(\d+):(\d+)\]|\b(vcc|exec|m0|scc)\b")
TRANS = ("v_exp_", "v_log_", "v_rcp_", "v_rsq_", "v_sqrt_", "v_sin_", "v_cos_")
def regs_of(op):
    out = set()
    for m in _REG.finditer(op):
        if m.group(1): out.add((m.group(1), int(m.group(2))))
        elif m.group(3):
            for i in range(int(m.group(4)), int(m.group(5)) + 1): out.add((m.group(3), i))
        else: out.add((m.group(6), 0))
    return out

class Ins:
    def __init__(self, text, lineno):
        self.text = text; self.lineno = lineno
        t = text.split(";")[0].strip()
        parts = t.split(None, 1)
        self.op = parts[0]
        rest = parts[1] if len(parts) > 1 else ""
        ops = [o.strip() for o in re.split(r",(?![^\[]*\])", rest)] if rest else []
        self.ops = ops
        op = self.op
        self.mfma = op.startswith("v_mfma")
        self.valu = op.startswith("v_") and not self.mfma
        self.trans = op.startswith(TRANS)
        self.salu = op.startswith("s_")
        self.ds = op.startswith("ds_")
        self.vmem = op.startswith(("buffer_", "global_", "flat_"))
        self.dst = set(); self.src = set(); self.srcc = set(); self.srcab = set()
        self.store_data = set()
        self.states = 1
        if op == "s_nop": self.states = int(ops[0], 0) + 1
        if self.mfma:
            self.dst = regs_of(ops[0]); self.srcab = regs_of(ops[1]) | regs_of(ops[2]); self.srcc = regs_of(ops[3].split()[0])
            self.src = self.srcab | self.srcc
            self.passes = 8 if "32x32" in op else 4
        elif self.valu:
            if op.startswith("v_cmp"):
                self.dst = regs_of(ops[0]); self.src = set().union(*[regs_of(o) for o in ops[1:]])
                if op.startswith("v_cmpx"): self.dst |= {("exec", 0)}
            elif op.startswith("v_permlane") and "swap" in op:
                self.dst = regs_of(ops[0]) | regs_of(ops[1]); self.src = set(self.dst)
            elif op.startswith(("v_add_co", "v_sub_co", "v_addc_co", "v_subb_co", "v_mad_u64")):
                self.dst = regs_of(ops[0]) | regs_of(ops[1]); self.src = set().union(*[regs_of(o) for o in ops[2:]])
            elif op == "v_nop": pass
            else:
                self.dst = regs_of(ops[0]); self.src = set().union(*[regs_of(o) for o in ops[1:]]) if len(ops) > 1 else set()
                if op.startswith(("v_fmac", "v_dot2c", "v_pk_fmac")) or "UNUSED_PRESERVE" in text: self.src |= self.dst
                if op.startswith("v_cndmask") and len(ops) == 3: self.src |= {("vcc", 0)}
        elif self.ds:
            if op.startswith(("ds_read", "ds_bpermute", "ds_permute", "ds_swizzle")):
                self.dst = regs_of(ops[0]); self.src = set().union(*[regs_of(o) for o in ops[1:]])
            else:
                self.src = set().union(*[regs_of(o) for o in ops])
        elif self.vmem:
            allr = [regs_of(o) for o in ops]
            if " lds" in (" " + rest) and op.startswith("buffer_load"):
                self.src = set().union(*allr) | {("m0", 0)}; self.dma = True
            elif op.startswith("global_load_lds"):
                self.src = set().union(*allr) | {("m0", 0)}; self.dma = True
            elif "load" in op:
                self.dst = allr[0]; self.src = set().union(*allr[1:])
            elif op.startswith("buffer_store") or op.startswith("buffer_atomic"):
                self.src = set().union(*allr)
                if op.endswith(("x3", "x4")): self.store_data = allr[0]
            elif op.startswith("global_store") or op.startswith("global_atomic"):
                self.src = set().union(*allr)
                if op.endswith(("x3", "x4")): self.store_data = allr[1]
            else:
                self.src = set().union(*allr) if allr else set()
        elif self.salu:
            if op.startswith(("s_cmp", "s_cbranch", "s_branch", "s_waitcnt", "s_barrier", "s_nop", "s_endpgm", "s_setprio", "s_sleep", "s_bitcmp")):
                self.src = set().union(*[regs_of(o) for o in ops]) if ops else set()
            else:
                self.dst = regs_of(ops[0]) if ops else set(); self.src = set().union(*[regs_of(o) for o in ops[1:]]) if len(ops) > 1 else set()
                if "saveexec" in op: self.dst |= {("exec", 0)}

def need(p, c):
    n = 0
    V = lambda s: {r for r in s if r[0] in "va"}
    S = lambda s: {r for r in s if r[0] in ("s", "vcc")}
    if p.valu:
        vd = V(p.dst); sd = S(p.dst)
        if c.mfma and vd & c.src: n = max(n, 2)
        if p.trans and c.valu and not c.trans and vd & c.src: n = max(n, 1)
        if p.trans and c.mfma and vd & c.src: n = max(n, 2)
        if c.op.startswith("v_permlane") and vd & c.src: n = max(n, 2)
        if c.op.startswith(("v_readfirstlane", "v_readlane")) and vd & c.src: n = max(n, 1)
        if "dpp" in c.text and c.valu and vd & c.src: n = max(n, 2)
        if ("sdwa" in p.text or "op_sel" in p.text) and c.valu and vd & (c.src | c.dst): n = max(n, 1)
        if sd and c.vmem and sd & c.src: n = max(n, 5)
        if sd and c.valu and sd & c.src: n = max(n, 4 if c.op.startswith(("v_readlane", "v_writelane", "v_div_fmas")) else 2)
        if ("exec", 0) in p.dst:
            if c.mfma or c.op.startswith(("v_permlane", "v_readlane", "v_readfirstlane", "v_writelane")): n = max(n, 4)
            if "dpp" in c.text: n = max(n, 5)
        if p.op.startswith("v_dot") and (c.valu or c.mfma) and vd & (c.src | c.dst) and not (c.op == p.op): n = max(n, 3)
    if p.mfma:
        d = p.dst
        big = {4: 8, 8: 12}[p.passes]
        if c.mfma:
            if d & c.srcab: n = max(n, big)
            if d & c.srcc:
                if not (c.srcc == d and c.op == p.op): n = max(n, {4: 6, 8: 10}[p.passes])
            elif d & c.dst and not (c.dst == d and c.op == p.op): n = max(n, {4: 6, 8: 10}[p.passes])
        elif (c.valu or c.ds or c.vmem) and d & (c.src | c.dst): n = max(n, big)
        if c.valu and p.srcc & c.dst: n = max(n, {4: 3, 8: 7}[p.passes])
    if p.store_data and (c.valu or c.ds or c.vmem or c.mfma) and p.store_data & c.dst: n = max(n, 2)
    if p.salu and ("m0", 0) in p.dst and getattr(c, "dma", False): n = max(n, 1)
    return n

def check(text, verbose=True):
    lines = text.split("\n")
    ins = []; labels = {}
    for i, ln in enumerate(lines):
        s = ln.split(";")[0].strip()
        if not s or s.startswith("."):
            if s.endswith(":"): labels[s[:-1]] = len(ins)
            continue
        if s.endswith(":"):
            labels[s[:-1]] = len(ins); continue
        ins.append(Ins(s, i + 1))
    probs = []
    def scan(seq, start_c=0):
        for j in range(start_c, len(seq)):
            c = seq[j]; dist = 0
            for i in range(j - 1, max(-1, j - 24), -1):
                p = seq[i]
                if p.op in ("s_endpgm", "s_branch"): break
                r = need(p, c)
                if r > dist:
                    probs.append((p.lineno, c.lineno, r, dist, p.text, c.text))
                dist += p.states
                if dist >= 20: break
    scan(ins)
    for j, b in enumerate(ins):
        if b.op.startswith(("s_cbranch", "s_branch")) and b.ops and b.ops[0] in labels:
            t = labels[b.ops[0]]
            pre = []
            for p in ins[max(0, j - 24):j]:
                if p.op in ("s_endpgm", "s_branch"): pre = []
                else: pre.append(p)
            nb = Ins("s_nop 0", b.lineno)
            seq = pre + [nb] + ins[t:t + 24]
            scan(seq, len(pre) + 1)
    probs = sorted(set(probs))
    if verbose:
        for p in probs: print("HAZARD line %d -> %d need %d have %d:\n    %s\n    %s" % p)
    return probs
```

```python
import sys
from asmlib import Asm, vr, sr, check

NAME = "recurrent_scan__grouped_kv_mqa__glu_gated_reglu__prompt"
QF = 0x000000
KV = 0x200000
OF = 0x240000
GB = 0x440000
WT = 0x640000
HF = 0x880000
WS_BYTES = 0x1000000
QSCALE = 0x3eb8aa3b
ST = ""

def srd(a, base, lo, hi, nbytes):
    a(f"s_mov_b32 s{base}, {lo}\ns_mov_b32 s{base+1}, {hi}\ns_mov_b32 s{base+2}, {nbytes}\ns_mov_b32 s{base+3}, 0x00020000")

def merge(mf, fill):
    out = []; n = len(mf); k = len(fill); pos = 0
    for i, m in enumerate(mf):
        out.append(m)
        end = (k * (i + 1)) // n
        out += fill[pos:end]; pos = end
    return out

def bf16r(a, d, s):
    a(f"v_cvt_pk_bf16_f32 v{d}, v{s}, v{s}\nv_and_b32 v{d}, 0xffff0000, v{d}")

XS, GUS, QS, KS_ = 16384, 28928, 4096, 2048
XB0, GU0, Q0, KW0 = 0, 49152, 135936, 148224
UOFF = 14336 + 128
K1_LDS = 154368
SCR = 32768

def k1(a):
    a.label("k1_kernel")
    a("s_cmp_ge_u32 s2, 256\ns_cbranch_scc1 .Lk1_end")
    a("s_load_dwordx16 s[4:19], s[0:1], 0\ns_load_dwordx8 s[20:27], s[0:1], 64")
    a("v_lshrrev_b32 v2, 6, v0\nv_and_b32 v1, 63, v0\ns_nop 0\nv_readfirstlane_b32 s56, v2")
    a("s_and_b32 s59, s2, 7\ns_lshr_b32 s60, s2, 3")
    a("s_and_b32 s57, s59, 1\ns_lshl_b32 s57, s57, 3\ns_and_b32 s61, s60, 7\ns_add_u32 s57, s57, s61")
    a("s_lshr_b32 s58, s59, 1\ns_lshl_b32 s58, s58, 2\ns_lshr_b32 s61, s60, 3\ns_add_u32 s58, s58, s61")
    a("s_and_b32 s70, s56, 1\ns_lshr_b32 s71, s56, 1\ns_xor_b32 s72, s70, s71")
    a("v_lshrrev_b32 v2, 3, v1\nv_lshrrev_b32 v3, 4, v1\nv_and_b32 v6, 7, v1\nv_xor_b32 v6, v6, v3")
    a("s_lshl_b32 s59, s57, 7\ns_lshl_b32 s60, s56, 4\ns_add_u32 s59, s59, s60\ns_lshl_b32 s59, s59, 10")
    a("v_lshlrev_b32 v2, 10, v2\nv_add_u32 v2, s59, v2")
    a("v_lshl_add_u32 v4, v6, 4, v2\nv_xor_b32 v6, 4, v6\nv_lshl_add_u32 v5, v6, 4, v2\nv_add_u32 v5, 0x2000, v5")
    a("s_lshl_b32 s64, s56, 11\ns_add_u32 s65, s64, 1024")
    a("v_lshlrev_b32 v10, 4, v1")
    a("v_and_b32 v2, 31, v1\nv_lshrrev_b32 v3, 5, v1")
    a("v_lshrrev_b32 v6, 1, v2\nv_and_b32 v6, 7, v6\nv_xor_b32 v6, v6, v3")
    a("s_lshl_b32 s59, s70, 13\nv_lshlrev_b32 v7, 7, v2\nv_add_u32 v7, s59, v7\nv_lshl_add_u32 v7, v6, 4, v7")
    for j in range(4):
        a(f"s_xor_b32 s59, s72, {j}\ns_lshl_b32 s59, s59, 5\nv_xor_b32 v{48+j}, s59, v7")
    a("v_and_b32 v6, 1, v1\nv_lshlrev_b32 v6, 1, v6\nv_bfe_u32 v7, v1, 1, 1\nv_or_b32 v6, v6, v7")
    a("v_bfe_u32 v7, v1, 2, 2\nv_lshl_add_u32 v7, v3, 3, v7")
    a("v_bfe_u32 v8, v1, 4, 1")
    a(f"v_mul_u32_u24 v9, 224, v7\nv_lshl_add_u32 v9, v6, 3, v9\nv_mul_u32_u24 v11, {UOFF}, v8\nv_add_u32 v9, v9, v11")
    a(f"s_lshl_b32 s59, s71, 6\ns_add_u32 s59, s59, {GU0}\nv_add_u32 v9, s59, v9")
    a(f"v_lshlrev_b32 v11, 6, v7\nv_lshl_add_u32 v11, v6, 3, v11\nv_lshl_add_u32 v11, v8, 5, v11\nv_add_u32 v11, {Q0}, v11")
    for j in range(4):
        a(f"s_xor_b32 s59, s72, {j}\ns_mul_i32 s60, s59, 3584\nv_add_u32 v{52+j}, s60, v9\ns_lshl_b32 s60, s59, 10\nv_add_u32 v{56+j}, s60, v11")
    a("s_lshr_b32 s73, s58, 1\ns_and_b32 s74, s58, 1")
    a("v_and_b32 v7, 15, v1\nv_lshrrev_b32 v8, 4, v1\ns_lshl_b32 s59, s73, 4\nv_add_u32 v9, s59, v7")
    a("v_lshrrev_b32 v11, 1, v9\nv_and_b32 v11, 7, v11\nv_xor_b32 v11, v11, v8\nv_lshlrev_b32 v60, 7, v9\nv_lshl_add_u32 v60, v11, 4, v60\nv_xor_b32 v61, 64, v60")
    a(f"v_bfe_u32 v11, v1, 2, 2\nv_lshl_add_u32 v11, v8, 3, v11\nv_lshlrev_b32 v62, 5, v11\nv_lshl_add_u32 v62, v6, 3, v62\nv_add_u32 v62, {KW0}, v62")
    a("v_bfe_u32 v7, v1, 2, 1\nv_bfe_u32 v8, v1, 3, 2\nv_and_b32 v9, 3, v1\nv_lshl_add_u32 v9, v7, 4, v9\nv_lshl_add_u32 v9, v8, 2, v9")
    a("v_lshlrev_b32 v63, 13, v3\nv_lshl_add_u32 v63, v9, 1, v63")
    for i in range(64, 144): a(f"v_mov_b32 v{i}, 0")
    a("s_waitcnt lgkmcnt(0)")
    srd(a, 28, "s4", "s5", 2097152)
    srd(a, 40, "s26", "s27", WS_BYTES)
    a("s_cmp_eq_u32 s74, 0\ns_cselect_b32 s44, s8, s10\ns_cselect_b32 s45, s9, s11\ns_mov_b32 s46, 16384\ns_mov_b32 s47, 0x00020000")
    a("s_lshl_b32 s59, s2, 3\ns_add_u32 s59, s59, s56\ns_lshr_b32 s75, s59, 4\ns_and_b32 s76, s59, 15")
    a("s_mov_b32 s50, 524288\ns_cmp_lt_u32 s75, 112\ns_cselect_b32 s48, s20, s12\ns_cselect_b32 s49, s21, s13\ns_cselect_b32 s50, 1835008, s50\ns_cselect_b32 s59, 0, 112\ns_mov_b32 s51, 0x00020000")
    a("s_sub_u32 s59, s75, s59\ns_lshl_b32 s77, s59, 14\ns_lshl_b32 s59, s76, 6\ns_add_u32 s77, s77, s59\ns_add_u32 s78, s77, 4096")
    a(f"s_mul_i32 s79, s76, 144\ns_add_u32 s79, s79, s75\ns_lshl_b32 s79, s79, 10\ns_add_u32 s79, s79, {WT}")
    srd(a, 52, "s12", "s13", 524288)
    a("s_lshr_b32 s59, s2, 4\ns_and_b32 s60, s2, 15\ns_add_u32 s61, s59, 16\ns_lshl_b32 s80, s61, 14\ns_lshl_b32 s61, s60, 6\ns_add_u32 s80, s80, s61\ns_add_u32 s81, s80, 4096")
    a(f"s_mul_i32 s82, s60, 144\ns_add_u32 s82, s82, s59\ns_add_u32 s82, s82, 128\ns_lshl_b32 s82, s82, 10\ns_add_u32 s82, s82, {WT}")
    a("s_cmp_eq_u32 s56, 7\ns_cbranch_scc1 .Lk1_setupq")
    a("s_cmp_le_u32 s56, 3\ns_cselect_b32 s32, s16, s18\ns_cselect_b32 s33, s17, s19\ns_mov_b32 s34, 1835008\ns_mov_b32 s35, 0x00020000")
    a("s_cmp_le_u32 s56, 2\ns_cselect_b32 s36, s16, s18\ns_cselect_b32 s37, s17, s19\ns_mov_b32 s38, 1835008\ns_mov_b32 s39, 0x00020000")
    a("s_mul_i32 s83, s58, 224\ns_movk_i32 s84, 4682\ns_movk_i32 s85, 3584")
    for j in range(4):
        a(f"s_lshl_b32 s59, s56, 2\ns_add_u32 s59, s59, {j}\ns_cmp_lt_u32 s59, 14\ns_cselect_b32 s60, 0, 14\ns_cselect_b32 s61, 0, {UOFF}\ns_sub_u32 s59, s59, s60\ns_add_u32 s61, s61, {GU0}")
        a(f"s_lshl_b32 s60, s59, 10\ns_add_u32 s{66+j}, s61, s60\ns_lshl_b32 s59, s59, 6\nv_add_u32 v2, s59, v1")
        a(f"v_mul_u32_u24 v3, s84, v2\nv_lshrrev_b32 v3, 16, v3\nv_mul_u32_u24 v6, 14, v3\nv_sub_u32 v6, v2, v6")
        a(f"v_mul_u32_u24 v3, s85, v3\nv_lshl_add_u32 v3, v6, 4, v3\nv_add_u32 v{12+j}, s83, v3")
    a("s_cmp_eq_u32 s56, 6\ns_cbranch_scc1 .Lk1_varB\ns_branch .Lk1_varA")
    a.label(".Lk1_setupq")
    srd(a, 32, "s6", "s7", 524288)
    srd(a, 36, "s6", "s7", 524288)
    a("s_lshl_b32 s83, s58, 6\nv_lshrrev_b32 v3, 2, v1\nv_and_b32 v6, 3, v1\nv_lshlrev_b32 v3, 10, v3\nv_lshl_add_u32 v3, v6, 4, v3\nv_add_u32 v3, s83, v3")
    for j in range(4):
        a(f"v_add_u32 v{12+j}, {j*16384}, v3\ns_mov_b32 s{66+j}, {Q0 + j*1024}")
    k1_variant(a, "C")
    a.label(".Lk1_varB")
    k1_variant(a, "B")
    a.label(".Lk1_varA")
    k1_variant(a, "A")
    a.label(".Lk1_end")
    a("s_endpgm")

def k1_variant(a, var):
    a.vm = []; a.lg = []
    isq = var in "BC"; kv = var == "C"
    wstride = 65536 if var == "C" else 229376
    wslot = QS if var == "C" else GUS
    XBF = lambda p, t: 16 + p * 8 + t * 4
    WFF = lambda p, u: 32 + p * 8 + u * 4
    ACC = lambda u, t: 64 + (u * 2 + t) * 16
    KACC = 128
    SUM = [132, 133]; SQ = [134, 135]; CS = [136, 137]; CSK = 138
    T0, T1, T2, T3 = 144, 145, 146, 147
    KX, KWF = 148, 152
    TR = 156
    def dma(stage):
        slot = stage % 3; g = []
        if kv:
            def f():
                a(f"s_mov_b32 m0, {KW0 + slot*KS_}\ns_mov_b32 s63, {stage*2048}")
                a.vmem("buffer_load_dwordx4 v10, s[44:47], s63 offen lds", f"S{stage}")
                a.vmem("buffer_load_dwordx4 v10, s[44:47], s63 offen offset:1024 lds", f"S{stage}")
            g.append(f)
        for i in range(2):
            def f(i=i):
                a(f"s_add_u32 m0, s{64+i}, {XB0 + slot*XS}\ns_mov_b32 s60, {stage*128}")
                a.vmem(f"buffer_load_dwordx4 v{4+i}, s[28:31], s60 offen lds", f"S{stage}")
            g.append(f)
        for j in range(4):
            def f(j=j):
                a(f"s_add_u32 m0, s{66+j}, {slot*wslot}\ns_mov_b32 s61, {stage*wstride}")
                a.vmem(f"buffer_load_dwordx4 v{12+j}, s[{32 if j < 2 else 36}:{35 if j < 2 else 39}], s61 offen lds", f"S{stage}")
            g.append(f)
        return g
    def reads(stage, j):
        slot = stage % 3; p = j & 1; tag = f"F{stage}_{j}"
        for t in range(2):
            a.lds(f"ds_read_b128 {vr(XBF(p,t),4)}, v{48+j} offset:{XB0 + slot*XS + t*4096}", tag)
        for u in range(2):
            for hf in range(2):
                if isq and u == 1:
                    a.lds(f"ds_read_b64_tr_b16 {vr(WFF(p,u)+2*hf,2)}, v{56+j} offset:{slot*QS + hf*256}", tag)
                else:
                    a.lds(f"ds_read_b64_tr_b16 {vr(WFF(p,u)+2*hf,2)}, v{52+j} offset:{slot*GUS + hf*896 + u*32}", tag)
    def kvreads(stage, m):
        slot = stage % 3; tag = f"KV{stage}_{m}"
        a.lds(f"ds_read_b128 {vr(KX,4)}, v{60+m} offset:{XB0 + slot*XS}", tag)
        for hf in range(2):
            a.lds(f"ds_read_b64_tr_b16 {vr(KWF+2*hf,2)}, v62 offset:{slot*KS_ + m*1024 + hf*128}", tag)
    def unpack_sum(reg, acc):
        return [f"v_lshlrev_b32 v{T0}, 16, v{reg}", f"v_and_b32 v{T1}, 0xffff0000, v{reg}", f"v_add_f32 v{acc}, v{acc}, v{T0}", f"v_add_f32 v{acc}, v{acc}, v{T1}"]
    def unpack_stat(reg, s, q):
        return [f"v_lshlrev_b32 v{T2}, 16, v{reg}", f"v_and_b32 v{T3}, 0xffff0000, v{reg}", f"v_add_f32 v{s}, v{s}, v{T2}", f"v_fmac_f32 v{q}, v{T2}, v{T2}",
                f"v_add_f32 v{s}, v{s}, v{T3}", f"v_fmac_f32 v{q}, v{T3}, v{T3}"]
    for s in range(3):
        for f in dma(s): f()
    def tloads(base, srdn, so1, so2):
        for i in range(8):
            a.vmem(f"buffer_load_ushort v{base+i}, v63, s[{srdn}:{srdn+3}], s{so1 if i < 4 else so2} offen offset:{(i&3)*1024}", "T")
    tloads(TR, 48, 77, 78)
    if var == "B": tloads(TR + 8, 52, 80, 81)
    a.wait_vm("S0"); a("s_barrier")
    reads(0, 0)
    pending_dma = []
    for s in range(8):
        for j in range(4):
            p = j & 1
            a.wait_lg(f"F{s}_{j}")
            if j == 3:
                if kv: a.wait_lg_all()
                if s < 7:
                    a.wait_vm(f"S{s+1}"); a("s_barrier")
                    reads(s + 1, 0)
                    if s + 3 < 8: pending_dma = dma(s + 3)
            else:
                reads(s, j + 1)
            if kv and j in (0, 1): kvreads(s, j)
            mf = [f"v_mfma_f32_32x32x16_bf16 {vr(ACC(u,t),16)}, {vr(WFF(p,u),4)}, {vr(XBF(p,t),4)}, {vr(ACC(u,t),16)}" for u in range(2) for t in range(2)]
            fill = []
            if j in (0, 2):
                t = j >> 1
                for d in range(4): fill += unpack_stat(XBF(p, t) + d, SUM[t], SQ[t])
            else:
                for u in range(2):
                    for d in range(4): fill += unpack_sum(WFF(p, u) + d, CS[u])
            seq = merge(mf, fill)
            nd = 0
            for k, ins in enumerate(seq):
                a(ins)
                if ins.startswith("v_mfma") and pending_dma and nd < 2:
                    pending_dma.pop(0)(); nd += 1
            if kv and j in (0, 1):
                a.wait_lg(f"KV{s}_{j}")
                a(f"v_mfma_f32_16x16x32_bf16 {vr(KACC,4)}, {vr(KWF,4)}, {vr(KX,4)}, {vr(KACC,4)}")
                for d in range(4):
                    for ins in unpack_sum(KWF + d, CSK): a(ins)
            if s == 3 and j == 1:
                for b, so in ([(TR, 79)] + ([(TR + 8, 82)] if var == "B" else [])):
                    for d in range(4): a(f"v_lshl_or_b32 v{b+d*2}, v{b+d*2+1}, 16, v{b+d*2}")
                    a(f"v_mov_b32 v{b+1}, v{b+2}\nv_mov_b32 v{b+2}, v{b+4}\nv_mov_b32 v{b+3}, v{b+6}")
                    a.vmem(f"buffer_store_dwordx4 {vr(b,4)}, v10, s[40:43], s{so} offen{ST}", "TS")
        assert "T" not in a.vm or s < 3
    assert not pending_dma
    a(f"s_nop 1\nv_permlane32_swap_b32 v{SUM[0]}, v{SUM[1]}\nv_permlane32_swap_b32 v{SQ[0]}, v{SQ[1]}")
    a(f"v_add_f32 v16, v{SUM[0]}, v{SUM[1]}\nv_add_f32 v17, v{SQ[0]}, v{SQ[1]}")
    a(f"v_lshlrev_b32 v2, 3, v1\ns_lshl_b32 s59, s70, 9\ns_add_u32 s59, s59, {SCR}\nv_add_u32 v3, s59, v2")
    a("s_lshl_b32 s59, s71, 10\nv_add_u32 v6, s59, v3")
    a("ds_write_b64 v6, v[16:17]")
    a(f"s_lshl_b32 s59, s56, 9\ns_add_u32 s59, s59, {SCR+4096}\nv_add_u32 v6, s59, v2\nv_xor_b32 v7, 512, v6")
    a(f"ds_write_b64 v6, {vr(CS[0],2)}")
    a("s_waitcnt lgkmcnt(0)\ns_barrier")
    for c in range(4): a(f"ds_read_b64 {vr(16+2*c,2)}, v3 offset:{c*1024}")
    a("ds_read_b64 v[24:25], v7")
    if kv:
        a(f"v_and_b32 v8, 15, v1\nv_lshlrev_b32 v8, 3, v8\ns_lshl_b32 s59, s73, 7\ns_add_u32 s59, s59, {SCR}\nv_add_u32 v8, s59, v8")
        for c in range(4): a(f"ds_read_b64 {vr(32+2*c,2)}, v8 offset:{c*1024}")
    a("s_waitcnt lgkmcnt(0)")
    def stats(b, nm, rs):
        a(f"v_add_f32 v{b}, v{b}, v{b+2}\nv_add_f32 v{b+1}, v{b+1}, v{b+3}\nv_add_f32 v{b+4}, v{b+4}, v{b+6}\nv_add_f32 v{b+5}, v{b+5}, v{b+7}")
        a(f"v_add_f32 v{b}, v{b}, v{b+4}\nv_add_f32 v{b+1}, v{b+1}, v{b+5}")
        a(f"v_mul_f32 v{b}, 0x3b000000, v{b}\nv_mul_f32 v{b+1}, 0x3b000000, v{b+1}")
        a(f"v_fma_f32 v{b+1}, -v{b}, v{b}, v{b+1}\nv_max_f32 v{b+1}, 0, v{b+1}")
        a(f"v_cvt_pk_bf16_f32 v{nm}, -v{b}, -v{b}")
        bf16r(a, b + 1, b + 1)
        a(f"v_add_f32 v{b+1}, 0x3727c5ac, v{b+1}")
        bf16r(a, b + 1, b + 1)
        a(f"v_sqrt_f32 v{b+1}, v{b+1}\ns_nop 0")
        bf16r(a, b + 1, b + 1)
        a(f"v_rcp_f32 v{rs}, v{b+1}\ns_nop 0")
    def split3(cs, d):
        a(f"v_cvt_pk_bf16_f32 v{T0}, v{cs}, v{cs}\nv_and_b32 v{T0}, 0xffff0000, v{T0}\nv_sub_f32 v{T0}, v{cs}, v{T0}")
        a(f"v_cvt_pk_bf16_f32 v{d}, v{cs}, v{T0}\nv_and_b32 v{T1}, 0xffff0000, v{d}\nv_sub_f32 v{T0}, v{T0}, v{T1}\nv_cvt_pk_bf16_f32 v{d+1}, v{T0}, 0")
    stats(16, 26, 28)
    a("v_mov_b32 v30, v26\nv_mov_b32 v29, v28\ns_nop 1\nv_permlane32_swap_b32 v26, v30\nv_permlane32_swap_b32 v28, v29")
    a("v_and_b32 v27, 0xffff, v26\nv_and_b32 v31, 0xffff, v30")
    a(f"v_add_f32 v{CS[0]}, v{CS[0]}, v24\nv_add_f32 v{CS[1]}, v{CS[1]}, v25")
    split3(CS[0], 16); split3(CS[1], 18)
    a("s_nop 1")
    NM = [26, 30]; RS = [28, 29]
    for u in range(2):
        for t in range(2):
            a(f"v_mfma_f32_32x32x8_bf16 {vr(ACC(u,t),16)}, {vr(16+2*u,2)}, {vr(NM[t],2)}, {vr(ACC(u,t),16)}")
    if kv:
        stats(32, 40, 42)
        a("v_and_b32 v41, 0xffff, v40")
        split3(CSK, 44)
        a(f"s_nop 1\nv_mfma_f32_16x16x16_bf16 {vr(KACC,4)}, v[44:45], v[40:41], {vr(KACC,4)}")
    a(f"s_lshl_b32 s59, s57, 2\ns_lshl_b32 s60, s70, 1\ns_add_u32 s59, s59, s60")
    a(f"s_mul_i32 s60, s59, 112\ns_mul_i32 s61, s58, 7\ns_add_u32 s60, s60, s61\ns_lshl_b32 s61, s71, 1\ns_add_u32 s60, s60, s61\ns_lshl_b32 s60, s60, 10\ns_add_u32 s60, s60, {HF}")
    a(f"s_lshl_b32 s61, s59, 5\ns_lshl_b32 s62, s58, 1\ns_add_u32 s61, s61, s62\ns_lshl_b32 s61, s61, 10\ns_add_u32 s61, s61, {QF}")
    a("v_mul_f32 v20, v28, v28\nv_mul_f32 v21, v29, v29")
    a(f"v_mul_f32 v22, {QSCALE}, v28\nv_mul_f32 v23, {QSCALE}, v29\ns_nop 4")
    ob = 0
    for u in range(2):
        for t in range(2):
            A = ACC(u, t); O = 32 + (ob & 1) * 8 if not kv else 48 + (ob & 1) * 8
            ob += 1
            if isq and u == 1:
                for i in range(16): a(f"v_mul_f32 v{A+i}, v{22+t}, v{A+i}")
                for i in range(8): a(f"v_cvt_pk_bf16_f32 v{O+i}, v{A+2*i}, v{A+2*i+1}")
                a(f"s_add_u32 s62, s61, {t*32768}")
                a(f"buffer_store_dwordx4 {vr(O,4)}, v10, s[40:43], s62 offen{ST}")
                a(f"buffer_store_dwordx4 {vr(O+4,4)}, v10, s[40:43], s62 offen offset:1024{ST}")
            else:
                for i in range(8): a(f"v_max_f32 v{A+i}, 0, v{A+i}\nv_mul_f32 v{A+8+i}, v{20+t}, v{A+8+i}")
                for i in range(8): a(f"v_mul_f32 v{A+i}, v{A+i}, v{A+8+i}")
                for i in range(4): a(f"v_cvt_pk_bf16_f32 v{O+i}, v{A+2*i}, v{A+2*i+1}")
                a(f"s_add_u32 s62, s60, {t*112*1024}")
                a(f"buffer_store_dwordx4 {vr(O,4)}, v10, s[40:43], s62 offen offset:{u*1024}{ST}")
    if kv:
        for i in range(4): a(f"v_mul_f32 v{KACC+i}, v42, v{KACC+i}")
        a(f"v_cvt_pk_bf16_f32 v44, v{KACC}, v{KACC+1}\nv_cvt_pk_bf16_f32 v45, v{KACC+2}, v{KACC+3}")
        a(f"s_lshl_b32 s59, s57, 2\ns_lshr_b32 s60, s73, 1\ns_add_u32 s59, s59, s60\ns_lshl_b32 s59, s59, 11\ns_add_u32 s59, s59, {KV}\ns_and_b32 s60, s73, 1")
        a("v_and_b32 v2, 15, v1\nv_lshrrev_b32 v3, 4, v1")
        a("s_cmp_eq_u32 s74, 0\ns_cbranch_scc0 .Lk1_vjob")
        a("v_and_b32 v6, 1, v3\nv_lshlrev_b32 v6, 9, v6\nv_lshl_add_u32 v6, v2, 4, v6\nv_lshrrev_b32 v7, 1, v3\nv_lshl_add_u32 v6, v7, 3, v6")
        a("s_lshl_b32 s60, s60, 8\ns_add_u32 s59, s59, s60")
        a(f"buffer_store_dwordx2 v[44:45], v6, s[40:43], s59 offen{ST}")
        a("s_endpgm")
        a.label(".Lk1_vjob")
        a("v_bfe_u32 v6, v2, 2, 1\nv_lshlrev_b32 v6, 8, v6\nv_lshl_add_u32 v6, v3, 6, v6\nv_lshrrev_b32 v7, 3, v2\nv_lshl_add_u32 v6, v7, 3, v6\nv_and_b32 v7, 3, v2\nv_lshl_add_u32 v6, v7, 1, v6")
        a("s_lshl_b32 s60, s60, 9\ns_add_u32 s59, s59, s60\ns_add_u32 s59, s59, 1024")
        a(f"buffer_store_short v44, v6, s[40:43], s59 offen{ST}")
        a(f"buffer_store_short_d16_hi v44, v6, s[40:43], s59 offen offset:16{ST}")
        a(f"buffer_store_short v45, v6, s[40:43], s59 offen offset:32{ST}")
        a(f"buffer_store_short_d16_hi v45, v6, s[40:43], s59 offen offset:48{ST}")
    a("s_endpgm")

K2_LDS = 163840
XCH = 131072
MARGIN = 0x42a00000

def k2(a):
    a.label("k2_kernel")
    a("s_cmp_ge_u32 s2, 256\ns_cbranch_scc1 .Lk2_end")
    a("s_load_dwordx2 s[26:27], s[0:1], 88")
    a("v_lshrrev_b32 v2, 6, v0\nv_and_b32 v1, 63, v0\ns_nop 0\nv_readfirstlane_b32 s56, v2\nv_lshlrev_b32 v10, 4, v1")
    a("s_waitcnt lgkmcnt(0)")
    srd(a, 40, "s26", "s27", WS_BYTES)
    a("s_cmp_ge_u32 s56, 8\ns_cbranch_scc1 .Lk2_gemm")
    k2_attn(a)
    a.label(".Lk2_gemm")
    k2_gemm(a)
    a.label(".Lk2_end")
    a("s_endpgm")

def k2_attn(a):
    a.vm = []; a.lg = []
    Q = 4; C = 16; S = [32, 48]; O = 64; P = 80; KF = [88, 92]; VF = [96, 104]
    a(f"s_lshl_b32 s57, s2, 3\ns_add_u32 s57, s57, s56\ns_lshl_b32 s57, s57, 10\ns_add_u32 s58, s57, {QF}\ns_add_u32 s57, s57, {OF}")
    a.vmem(f"buffer_load_dwordx4 {vr(Q,4)}, v10, s[40:43], s58 offen", "Q")
    a(f"s_lshl_b32 s59, s56, 10\ns_add_u32 s60, s59, {KV}")
    for i in range(16):
        a(f"s_add_u32 m0, s59, {i*8192}\ns_add_u32 s61, s60, {i*8192}")
        a.vmem("buffer_load_dwordx4 v10, s[40:43], s61 offen lds", "KV0" if i < 3 else "KV1")
    a("v_and_b32 v2, 31, v1\nv_lshrrev_b32 v3, 5, v1\nv_lshlrev_b32 v12, 4, v2\nv_lshl_add_u32 v12, v3, 8, v12\nv_add_u32 v12, 1024, v12")
    for i in range(16): a(f"v_mov_b32 v{VF[0]+i}, 0x3f803f80")
    a("s_mov_b32 s62, 0x0000ffff\ns_mov_b32 s63, 0x0000ffff")
    a("s_mov_b32 s64, 1\ns_mov_b32 s65, 0")
    a(f"s_mov_b32 s68, {MARGIN}")
    a.wait_vm("KV0"); a("s_barrier")
    a.label(".Lk2_pass")
    a("v_mov_b32 v11, v10\nv_mov_b32 v14, 0xff800000\ns_mov_b32 s66, s64")
    a.label(".Lk2_maxloop")
    a(f"ds_read_b128 {vr(KF[0],4)}, v11\nds_read_b128 {vr(KF[1],4)}, v11 offset:2048\nv_add_u32 v11, 4096, v11\ns_waitcnt lgkmcnt(0)")
    a(f"v_mfma_f32_32x32x16_bf16 {vr(S[0],16)}, {vr(KF[0],4)}, {vr(Q,4)}, 0")
    a(f"v_mfma_f32_32x32x16_bf16 {vr(S[1],16)}, {vr(KF[1],4)}, {vr(Q,4)}, 0")
    a("s_sub_u32 s66, s66, 1\ns_nop 10")
    for i in range(16): a(f"v_max3_f32 v14, v{S[0]+2*i}, v{S[0]+2*i+1}, v14")
    a("s_cmp_lg_u32 s66, 0\ns_cbranch_scc1 .Lk2_maxloop")
    a("v_mov_b32 v15, v14\ns_nop 1\nv_permlane32_swap_b32 v14, v15\nv_max_f32 v14, v14, v15\nv_add_f32 v14, s68, v14")
    for i in range(16): a(f"v_sub_f32 v{C+i}, 0, v14\nv_mov_b32 v{O+i}, 0")
    a("v_mov_b32 v11, v10\nv_mov_b32 v13, v12")
    a(f"ds_read_b128 {vr(KF[0],4)}, v11\nds_read_b128 {vr(KF[1],4)}, v11 offset:2048")
    a("s_mov_b64 exec, s[62:63]")
    for t in range(2):
        a(f"ds_read_b128 {vr(VF[t],4)}, v13 offset:{t*2048}\nds_read_b128 {vr(VF[t]+4,4)}, v13 offset:{t*2048+512}")
    a("s_mov_b64 exec, -1\ns_waitcnt lgkmcnt(0)")
    a(f"v_mfma_f32_32x32x16_bf16 {vr(S[0],16)}, {vr(KF[0],4)}, {vr(Q,4)}, {vr(C,16)}")
    a("s_mov_b32 s67, 0\ns_nop 10")
    a.label(".Lk2_loop")
    a.lg = ["K1", "V0a", "V0b", "V1a", "V1b"][0:0]
    a.lg = ["K", "V", "V"]
    for t in range(8):
        p = t & 1; q = p ^ 1; s = S[p]
        E = lambda i: f"v_exp_f32 v{s+i}, v{s+i}"
        CV = lambda i: f"v_cvt_pk_bf16_f32 v{P+i}, v{s+2*i}, v{s+2*i+1}"
        a("s_waitcnt lgkmcnt(2)")
        a(f"v_mfma_f32_32x32x16_bf16 {vr(S[q],16)}, {vr(KF[q],4)}, {vr(Q,4)}, {vr(C,16)}")
        a(f"ds_read_b128 {vr(KF[p],4)}, v11 offset:{(t+2)*2048}")
        for x in [E(0), E(1), E(2), E(3), CV(0), E(4), E(5), CV(1), E(6), E(7), CV(2), E(8), CV(3), E(9), E(10)]: a(x)
        a(f"v_mfma_f32_32x32x16_bf16 {vr(O,16)}, {vr(VF[p],4)}, {vr(P,4)}, {vr(O,16)}")
        for x in [E(11), CV(4), E(12), E(13), CV(5), E(14), E(15), CV(6)]: a(x)
        if t == 7: a("v_add_u32 v11, 0x4000, v11")
        else: a("s_nop 0")
        a(CV(7))
        if t == 7: a("s_add_u32 s67, s67, 1\ns_cmp_eq_u32 s67, 8")
        else: a("s_nop 1")
        a(f"v_mfma_f32_32x32x16_bf16 {vr(O,16)}, {vr(VF[p]+4,4)}, {vr(P+4,4)}, {vr(O,16)}")
        a("s_mov_b64 exec, s[62:63]")
        a(f"ds_read_b128 {vr(VF[p],4)}, v13 offset:{(t+2)*2048}\nds_read_b128 {vr(VF[p]+4,4)}, v13 offset:{(t+2)*2048+512}")
        a("s_mov_b64 exec, -1")
    a("v_add_u32 v13, 0x4000, v13")
    a("s_cbranch_scc1 .Lk2_done")
    a("s_add_u32 s66, s67, s65\ns_cmp_lg_u32 s66, 1\ns_cbranch_scc1 .Lk2_loop")
    a("s_waitcnt vmcnt(0)\ns_barrier\ns_branch .Lk2_loop")
    a.label(".Lk2_done")
    a("s_waitcnt lgkmcnt(0)\ns_nop 10")
    a("s_cmp_lg_u32 s65, 0\ns_cbranch_scc1 .Lk2_fin")
    a(f"v_mul_f32 v14, 0, v{O}")
    for i in range(1, 8): a(f"v_fmac_f32 v14, 0, v{O+i}")
    a(f"v_add_f32 v14, v14, v{O+8}\nv_mov_b32 v15, 0x7b800000\nv_cmp_nlt_f32 vcc, v14, v15")
    a("s_nop 3\ns_cmp_eq_u64 vcc, 0\ns_cbranch_scc1 .Lk2_fin")
    a("s_mov_b32 s64, 32\ns_mov_b32 s65, 16\ns_mov_b32 s68, 0\ns_branch .Lk2_pass")
    a.label(".Lk2_fin")
    a(f"v_rcp_f32 v14, v{O+8}\ns_nop 0")
    for i in range(8): a(f"v_mul_f32 v{O+i}, v14, v{O+i}")
    for i in range(4): a(f"v_cvt_pk_bf16_f32 v{P+i}, v{O+2*i}, v{O+2*i+1}")
    a(f"buffer_store_dwordx4 {vr(P,4)}, v10, s[40:43], s57 offen{ST}")
    a("s_endpgm")

def tile_map(a):
    a("s_and_b32 s59, s2, 7\ns_lshr_b32 s60, s2, 3\ns_lshl_b32 s70, s59, 2\ns_and_b32 s61, s60, 3\ns_add_u32 s70, s70, s61\ns_lshr_b32 s71, s60, 2")

def k2_gemm(a):
    a.vm = []; a.lg = []
    a("s_setprio 3")
    tile_map(a)
    a("s_sub_u32 s56, s56, 8\ns_lshr_b32 s72, s56, 1\ns_and_b32 s73, s56, 1")
    a(f"s_lshl_b32 s59, s70, 1\ns_add_u32 s59, s59, s72\ns_mul_i32 s59, s59, 112\ns_mul_i32 s60, s73, 56\ns_add_u32 s59, s59, s60\ns_lshl_b32 s59, s59, 10\ns_add_u32 s74, s59, {HF}")
    a(f"s_mul_i32 s59, s71, 288\ns_add_u32 s59, s59, s60\ns_lshl_b32 s59, s59, 10\ns_add_u32 s75, s59, {WT}\ns_add_u32 s76, s75, {144*1024}")
    ACC = [16, 32]; BUF = lambda i, k: 48 + i * 12 + k * 4
    def loads(i):
        off = (i & 3) * 1024
        for k in range(3):
            a.vmem(f"buffer_load_dwordx4 {vr(BUF(i,k),4)}, v10, s[40:43], s{74+k} offen offset:{off}", f"L{i}")
        if (i & 3) == 3: a("s_add_u32 s74, s74, 4096\ns_add_u32 s75, s75, 4096\ns_add_u32 s76, s76, 4096")
    for i in range(8): loads(i)
    for i in range(32): a(f"v_mov_b32 v{16+i}, 0")
    a(f"v_mov_b32 v2, {XCH+16384}\ns_lshl_b32 s59, s56, 2\nv_add_u32 v2, s59, v2\nv_xor_b32 v3, 4, v2\nv_mov_b32 v4, 0\nds_write_b32 v2, v4\ns_waitcnt lgkmcnt(0)")
    a("s_barrier\ns_barrier")
    a("s_mov_b32 s67, 0")
    a.label(".Lk2_gloop")
    for i in range(8):
        a("s_waitcnt vmcnt(21)")
        for n in range(2):
            a(f"v_mfma_f32_32x32x16_bf16 {vr(ACC[n],16)}, {vr(BUF(i,1+n),4)}, {vr(BUF(i,0),4)}, {vr(ACC[n],16)}")
        loads(i)
    a("s_add_u32 s67, s67, 1\ns_cmp_lt_u32 s67, 6\ns_cbranch_scc1 .Lk2_gloop")
    for i in range(8):
        a(f"s_waitcnt vmcnt({21-3*i})")
        for n in range(2):
            a(f"v_mfma_f32_32x32x16_bf16 {vr(ACC[n],16)}, {vr(BUF(i,1+n),4)}, {vr(BUF(i,0),4)}, {vr(ACC[n],16)}")
    a(f"s_lshl_b32 s59, s56, 12\ns_add_u32 s59, s59, {XCH}\nv_add_u32 v5, s59, v10\nv_xor_b32 v6, 0x1000, v5\ns_nop 7")
    a("s_cmp_eq_u32 s73, 0\ns_cbranch_scc1 .Lk2_g0")
    for i in range(16): a(f"v_mov_b32 v{48+i}, v{16+i}\nv_mov_b32 v{16+i}, v{32+i}")
    a("s_branch .Lk2_g1")
    a.label(".Lk2_g0")
    for i in range(16): a(f"v_mov_b32 v{48+i}, v{32+i}")
    a.label(".Lk2_g1")
    for i in range(4): a(f"ds_write_b128 v5, {vr(48+4*i,4)} offset:{i*1024}")
    a("v_mov_b32 v4, 1\ns_waitcnt lgkmcnt(0)\nds_write_b32 v2, v4")
    a.label(".Lk2_gwait")
    a("ds_read_b32 v7, v3\ns_waitcnt lgkmcnt(0)\nv_readfirstlane_b32 s59, v7\ns_cmp_eq_u32 s59, 1\ns_cbranch_scc1 .Lk2_gok\ns_sleep 2\ns_branch .Lk2_gwait")
    a.label(".Lk2_gok")
    for i in range(4): a(f"ds_read_b128 {vr(64+4*i,4)}, v6 offset:{i*1024}")
    a(f"s_lshl_b32 s59, s70, 3\ns_add_u32 s59, s59, s71\ns_lshl_b32 s59, s59, 2\ns_add_u32 s59, s59, s56\ns_lshl_b32 s59, s59, 11\ns_add_u32 s59, s59, {GB}")
    a("s_waitcnt lgkmcnt(0)")
    for i in range(16): a(f"v_add_f32 v{16+i}, v{16+i}, v{64+i}")
    for i in range(8): a(f"v_cvt_pk_bf16_f32 v{32+i}, v{16+2*i}, v{17+2*i}")
    a(f"buffer_store_dwordx4 v[32:35], v10, s[40:43], s59 offen{ST}\nbuffer_store_dwordx4 v[36:39], v10, s[40:43], s59 offen offset:1024{ST}")
    a("s_endpgm")

K3_LDS = 65536
def k3(a):
    a.vm = []; a.lg = []
    a.label("k3_kernel")
    a("s_cmp_ge_u32 s2, 256\ns_cbranch_scc1 .Lk3_end")
    a("s_load_dwordx2 s[4:5], s[0:1], 0\ns_load_dwordx2 s[22:23], s[0:1], 72\ns_load_dwordx2 s[26:27], s[0:1], 88")
    a("v_lshrrev_b32 v2, 6, v0\nv_and_b32 v1, 63, v0\ns_nop 0\nv_readfirstlane_b32 s56, v2\nv_lshlrev_b32 v10, 4, v1")
    tile_map(a)
    a(f"s_lshl_b32 s59, s70, 6\ns_lshl_b32 s60, s56, 3\ns_add_u32 s59, s59, s60\ns_lshl_b32 s59, s59, 10\ns_add_u32 s74, s59, {OF}\ns_add_u32 s75, s74, 32768")
    a(f"s_mul_i32 s59, s71, 288\ns_add_u32 s59, s59, s60\ns_add_u32 s59, s59, 112\ns_lshl_b32 s59, s59, 10\ns_add_u32 s76, s59, {WT}\ns_add_u32 s77, s76, {144*1024}")
    a(f"s_lshl_b32 s59, s70, 3\ns_add_u32 s59, s59, s71\ns_lshl_b32 s59, s59, 2\ns_add_u32 s59, s59, s56\ns_lshl_b32 s59, s59, 11\ns_add_u32 s78, s59, {GB}")
    a("s_lshr_b32 s72, s56, 1\ns_and_b32 s73, s56, 1\ns_lshl_b32 s59, s70, 1\ns_add_u32 s59, s59, s72\ns_lshl_b32 s59, s59, 15\ns_lshl_b32 s60, s71, 1\ns_add_u32 s60, s60, s73\ns_lshl_b32 s60, s60, 6\ns_add_u32 s79, s59, s60")
    a("v_and_b32 v2, 31, v1\nv_lshrrev_b32 v3, 5, v1\nv_lshlrev_b32 v11, 10, v2\nv_lshl_add_u32 v11, v3, 5, v11")
    a("s_waitcnt lgkmcnt(0)")
    srd(a, 40, "s26", "s27", WS_BYTES); srd(a, 28, "s4", "s5", 2097152); srd(a, 32, "s22", "s23", 2097152)
    ACC = lambda th, nt: 16 + (th * 2 + nt) * 16
    BUF = lambda i, k: 96 + i * 16 + k * 4
    a.vmem("buffer_load_dwordx4 v[80:83], v10, s[40:43], s78 offen", "B")
    a.vmem("buffer_load_dwordx4 v[84:87], v10, s[40:43], s78 offen offset:1024", "B")
    for i in range(8):
        for k in range(4):
            a.vmem(f"buffer_load_dwordx4 {vr(BUF(i,k),4)}, v10, s[40:43], s{74+k} offen offset:{(i&3)*1024}", f"L{i}")
        if i == 3: a("s_add_u32 s74, s74, 4096\ns_add_u32 s75, s75, 4096\ns_add_u32 s76, s76, 4096\ns_add_u32 s77, s77, 4096")
    a.vmem("buffer_load_dwordx4 v[88:91], v11, s[28:31], s79 offen", "X")
    a.vmem("buffer_load_dwordx4 v[92:95], v11, s[28:31], s79 offen offset:16", "X")
    G = 224
    a.wait_vm("B")
    for d in range(8):
        a(f"v_lshlrev_b32 v{G+2*d}, 16, v{80+d}\nv_and_b32 v{G+2*d+1}, 0xffff0000, v{80+d}")
    for i in range(16): a(f"v_mul_f32 v{240+i}, 0xbfb8aa3b, v{G+i}")
    for i in range(16): a(f"v_exp_f32 v{240+i}, v{240+i}")
    for i in range(16): a(f"v_add_f32 v{240+i}, 1.0, v{240+i}")
    for i in range(16): a(f"v_rcp_f32 v{240+i}, v{240+i}")
    for i in range(16): a(f"v_mul_f32 v{G+i}, v{G+i}, v{240+i}")
    for d in range(8):
        a(f"v_cvt_pk_bf16_f32 v{80+d}, v{G+2*d}, v{G+2*d+1}")
    for d in range(8):
        a(f"v_lshlrev_b32 v{G+2*d}, 16, v{80+d}\nv_and_b32 v{G+2*d+1}, 0xffff0000, v{80+d}")
    for i in range(8):
        a.wait_vm(f"L{i}")
        for th in range(2):
            for nt in range(2):
                c = "0" if i == 0 else vr(ACC(th, nt), 16)
                a(f"v_mfma_f32_32x32x16_bf16 {vr(ACC(th,nt),16)}, {vr(BUF(i,2+nt),4)}, {vr(BUF(i,th),4)}, {c}")
    a("s_lshl_b32 s59, s56, 12\nv_add_u32 v5, s59, v10\ns_lshl_b32 s59, s56, 14\nv_add_u32 v6, s59, v10\ns_nop 7")
    for q in range(4):
        for i in range(4): a(f"ds_write_b128 v5, {vr(16+q*16+4*i,4)} offset:{q*16384+i*1024}")
    a("s_waitcnt lgkmcnt(0)\ns_barrier")
    for sw in range(4):
        for i in range(4): a(f"ds_read_b128 {vr(16+sw*16+4*i,4)}, v6 offset:{sw*4096+i*1024}")
    a("s_waitcnt lgkmcnt(0)")
    for i in range(16): a(f"v_add_f32 v{16+i}, v{16+i}, v{32+i}\nv_add_f32 v{48+i}, v{48+i}, v{64+i}")
    for i in range(16): a(f"v_add_f32 v{16+i}, v{16+i}, v{48+i}")
    for d in range(8): a(f"v_cvt_pk_bf16_f32 v{32+d}, v{16+2*d}, v{17+2*d}")
    for d in range(8): a(f"v_lshlrev_b32 v{16+2*d}, 16, v{32+d}\nv_and_b32 v{17+2*d}, 0xffff0000, v{32+d}")
    for i in range(16): a(f"v_mul_f32 v{16+i}, v{16+i}, v{G+i}")
    for d in range(8): a(f"v_cvt_pk_bf16_f32 v{32+d}, v{16+2*d}, v{17+2*d}")
    a.wait_vm("X")
    for d in range(8):
        a(f"v_lshlrev_b32 v{16+2*d}, 16, v{32+d}\nv_and_b32 v{17+2*d}, 0xffff0000, v{32+d}")
        a(f"v_lshlrev_b32 v{48+2*d}, 16, v{88+d}\nv_and_b32 v{49+2*d}, 0xffff0000, v{88+d}")
    for i in range(16): a(f"v_add_f32 v{16+i}, v{16+i}, v{48+i}")
    for d in range(8): a(f"v_cvt_pk_bf16_f32 v{32+d}, v{16+2*d}, v{17+2*d}")
    a("buffer_store_dwordx4 v[32:35], v11, s[32:35], s79 offen\nbuffer_store_dwordx4 v[36:39], v11, s[32:35], s79 offen offset:16")
    a.label(".Lk3_end")
    a("s_endpgm")

def desc(name, vgpr, sgpr=96):
    acc = (vgpr + 3) // 4 * 4
    return f""".amdhsa_kernel {name}
  .amdhsa_next_free_vgpr {vgpr}
  .amdhsa_next_free_sgpr {sgpr}
  .amdhsa_accum_offset {acc}
  .amdhsa_group_segment_fixed_size 0
  .amdhsa_kernarg_size 96
  .amdhsa_user_sgpr_count 2
  .amdhsa_user_sgpr_kernarg_segment_ptr 1
  .amdhsa_system_sgpr_workgroup_id_x 1
.end_amdhsa_kernel
"""

def build():
    head = open(f"cdna_kernels/{NAME}.s.ref").read().split("; Override launch")[0]
    head += f"; @launch kernel=k1_kernel grid=(256,1,1) block=(512,1,1) lds={K1_LDS}\n"
    head += f"; @launch kernel=k2_kernel grid=(256,1,1) block=(768,1,1) lds={K2_LDS}\n"
    head += f"; @launch kernel=k3_kernel grid=(256,1,1) block=(256,1,1) lds={K3_LDS}\n"
    head += '.amdgcn_target "amdgcn-amd-amdhsa--gfx950"\n.text\n'
    body = ""
    for nm, fn in (("k1_kernel", k1), ("k2_kernel", k2), ("k3_kernel", k3)):
        a = Asm(); fn(a)
        t = a.text()
        check(t)
        body += f".globl {nm}\n.p2align 8\n.type {nm},@function\n" + t
    tail = '.section .rodata,"a"\n'
    for nm, v in (("k1_kernel", 172), ("k2_kernel", 144), ("k3_kernel", 256)):
        tail += ".p2align 6\n" + desc(nm, v)
    return head + body + tail

if __name__ == "__main__":
    out = sys.argv[1] if len(sys.argv) > 1 else f"cdna_kernels/{NAME}.s"
    open(out, "w").write(build())
    print("wrote", out)
```
